```python
import torch

def _softmax(x, axis=-1):
    return torch.softmax(x, dim=axis)
def _gelu(x):
    return torch.nn.functional.gelu(x, approximate="tanh")
def _silu(x):
    return torch.nn.functional.silu(x)
def _sigmoid(x):
    return torch.sigmoid(x)
def _layernorm(x, axis=-1, eps=1e-5):
    m = x.mean(dim=axis, keepdim=True)
    v = x.var(dim=axis, keepdim=True, unbiased=False)
    return (x - m) / torch.sqrt(v + eps)
def _scatter_add(tgt, idx, src, axis=0):
    return tgt.clone().index_add_(axis, idx, src)
def _segment_sum(src, seg, n):
    out = torch.zeros((n,) + src.shape[1:], dtype=src.dtype)
    return out.index_add_(0, seg, src)
def _pad(x, pw):
    flat = tuple(v for pair in reversed(pw) for v in pair)
    return torch.nn.functional.pad(x, flat)

kernel_name = 'concat_heads__softmax_full_mha__linear_kernel_hedgehog__prompt'

def setup_inputs():

    _w = (lambda a: (lambda t: t.to(torch.bfloat16) if t.is_floating_point() else t)(torch.as_tensor(a)))
    def _A_setup():
        B, S, D = 1, 2048, 1024
        return {
            "x": _w((lambda *s: torch.randn(*s, dtype=torch.bfloat16) * 0.2)(B, S, D)),
            "wqkv": _w((lambda *s: torch.randn(*s, dtype=torch.bfloat16) * 0.2)(D, 3 * D)),
            "wo": _w((lambda *s: torch.randn(*s, dtype=torch.bfloat16) * 0.05)(D, D)),
        }
    _A_in = _A_setup()

    def _B_setup():
        B, S, D, H = 1, 2048, 1024, 32
        Dh = D // H
        return {
            "x": _w((lambda *s: torch.randn(*s, dtype=torch.bfloat16) * 0.4)(B, S, D)),
            "wqkv": _w((lambda *s: torch.randn(*s, dtype=torch.bfloat16) * 0.4)(D, 3 * D)),
            "w_phi": _w((lambda *s: torch.randn(*s, dtype=torch.bfloat16) * 0.4)(H, Dh, Dh) * (Dh ** -0.5)),
            "wo": _w((lambda *s: torch.randn(*s, dtype=torch.bfloat16) * 0.05)(D, D)),
        }
    _B_in = _B_setup()

    return {
        "A_x": _A_in["x"],
        "A_wqkv": _A_in["wqkv"],
        "A_wo": _A_in["wo"],
        "B_x": _B_in["x"],
        "B_wqkv": _B_in["wqkv"],
        "B_w_phi": _B_in["w_phi"],
        "B_wo": _B_in["wo"],
    }

def reference(A_x, A_wqkv, A_wo, B_x, B_wqkv, B_w_phi, B_wo):
    def _A_ref(x, wqkv, wo):
        B, S, D = x.shape
        H = 32; Dh = D // H
        qkv = (lambda x, *d: x.permute(*d))((x @ wqkv).reshape(B, S, 3, H, Dh), 2, 0, 3, 1, 4)
        q, k, v = qkv[0], qkv[1], qkv[2]
        scale = Dh ** -0.5
        scores = torch.einsum("bhqd,bhkd->bhqk", q, k) * scale
        p = _softmax(scores, axis=-1)
        o = torch.einsum("bhqk,bhkd->bhqd", p, v)
        return (lambda x, *d: x.permute(*d))(o, 0, 2, 1, 3).reshape(B, S, D) @ wo

    def _B_ref(x, wqkv, w_phi, wo):
        B, S, D = x.shape
        H = 32; Dh = D // H
        qkv = (lambda x, *d: x.permute(*d))((x @ wqkv).reshape(B, S, 3, H, Dh), 2, 0, 3, 1, 4)
        q, k, v = qkv[0], qkv[1], qkv[2]
        pq = torch.einsum("bhsd,hdf->bhsf", q, w_phi)
        pk = torch.einsum("bhsd,hdf->bhsf", k, w_phi)
        phi_q = torch.concatenate([_softmax(pq, axis=-1), _softmax(-pq, axis=-1)], axis=-1)
        phi_k = torch.concatenate([_softmax(pk, axis=-1), _softmax(-pk, axis=-1)], axis=-1)
        kv = torch.einsum("bhsf,bhsd->bhfd", phi_k, v)
        z  = torch.einsum("bhsf->bhf", phi_k)
        num = torch.einsum("bhqf,bhfd->bhqd", phi_q, kv)
        den = torch.einsum("bhqf,bhf->bhq", phi_q, z)[..., None] + 1e-6
        o = num / den
        return (lambda x, *d: x.permute(*d))(o, 0, 2, 1, 3).reshape(B, S, D) @ wo

    a = _A_ref(A_x, A_wqkv, A_wo)
    b = _B_ref(B_x, B_wqkv, B_w_phi, B_wo)
    return torch.concatenate([a, b], axis=-1)
```

```python
import struct


def f32bits(x):
    return struct.unpack("<I", struct.pack("<f", x))[0]


class Asm:
    def __init__(self):
        self.lines = []

    def __call__(self, s):
        for ln in s.strip("\n").split("\n"):
            self.lines.append("  " + ln.strip())

    def label(self, name):
        self.lines.append(f"{name}:")

    def raw(self, s):
        self.lines.append(s)

    def comment(self, s):
        self.lines.append("  ; " + s)

    def text(self):
        return "\n".join(self.lines) + "\n"


def vr(base, n):
    return f"v[{base}:{base + n - 1}]" if n > 1 else f"v{base}"


def sr(base, n):
    return f"s[{base}:{base + n - 1}]" if n > 1 else f"s{base}"


def m32(d, a, b, c):
    cs = "0" if c is None else vr(c, 16)
    return f"v_mfma_f32_32x32x16_bf16 {vr(d, 16)}, {vr(a, 4)}, {vr(b, 4)}, {cs}"


def sm16(d, a, b, idx):
    return f"v_smfmac_f32_16x16x64_bf16 {vr(d, 4)}, {vr(a, 4)}, {vr(b, 8)}, v{idx}"


def cvt(d, a, b=None):
    if b is None:
        b = a + 1
    return f"v_cvt_pk_bf16_f32 v{d}, v{a}, v{b}"


def dsr128(d, addr, off):
    return f"ds_read_b128 {vr(d, 4)}, v{addr} offset:{off}"


def dsrtr(d, addr, off):
    return f"ds_read_b64_tr_b16 {vr(d, 2)}, v{addr} offset:{off}"


def srd(a, d, ptr, nbytes):
    a(f"s_mov_b32 s{d}, s{ptr}")
    a(f"s_and_b32 s{d + 1}, s{ptr + 1}, 0xffff")
    a(f"s_mov_b32 s{d + 2}, {nbytes}")
    a(f"s_mov_b32 s{d + 3}, 0x20000")


def kdesc(name, vgpr, sgpr=102):
    acc = (vgpr + 3) // 4 * 4
    return f""".p2align 6
.amdhsa_kernel {name}
  .amdhsa_next_free_vgpr {vgpr}
  .amdhsa_next_free_sgpr {sgpr}
  .amdhsa_accum_offset {acc}
  .amdhsa_group_segment_fixed_size 0
  .amdhsa_kernarg_size 80
  .amdhsa_user_sgpr_count 2
  .amdhsa_user_sgpr_kernarg_segment_ptr 1
  .amdhsa_system_sgpr_workgroup_id_x 1
  .amdhsa_float_denorm_mode_32 3
.end_amdhsa_kernel
"""
```

```python
from asmlib import *
from common import *
import math

NAME = "qkv_kernel"
LDS_BYTES = 147456 + 8 * 2048

S_SRDX, S_SRDW, S_SRDWS, S_SRDPHI = 16, 20, 24, 28
S_BR, S_RB, S_HP, S_W, S_WM, S_WN = 32, 33, 34, 35, 36, 37
S_XOFF, S_WOFF = 38, 39
S_XLB, S_WLB = 40, 41
S_J = 42
S_XCUR, S_XPREV = 43, 44
S_WT = 45
S_LO = 46
S_T0, S_T1, S_T2, S_T3 = 48, 49, 50, 51
S_XD = 52
S_HEAD = 53
S_C = 54
S_XLB2 = 55
V_LANE = 1
V_XE, V_XO, V_W0, V_W1 = 2, 3, 4, 5
V_XA = 6
V_WA = 10
V_T0, V_T1, V_T2, V_T3, V_T4 = 11, 12, 13, 14, 15
F = [16, 36]
ACC = 64


def acc(seg, mt):
    return ACC + seg * 32 + mt * 16


def reads(fs, kk, woff):
    r = []
    r.append(dsr128(fs + 0, V_XA + kk, 0))
    r.append(dsrtr(fs + 8, V_WA, woff + 0))
    r.append(dsrtr(fs + 10, V_WA, woff + 512))
    r.append(dsr128(fs + 4, V_XA + kk, 4096))
    r.append(dsrtr(fs + 12, V_WA, woff + 4096))
    r.append(dsrtr(fs + 14, V_WA, woff + 4096 + 512))
    r.append(dsrtr(fs + 16, V_WA, woff + 8192))
    r.append(dsrtr(fs + 18, V_WA, woff + 8192 + 512))
    return r


def mfmas(fs):
    r = []
    for seg in range(3):
        for mt in range(2):
            x = fs + 4 * mt
            w = fs + 8 + 4 * seg
            d = acc(seg, mt)
            if seg < 2:
                r.append(m32(d, w, x, d))
            else:
                r.append(m32(d, x, w, d))
    return r


def dma_x(p):
    g = []
    g.append([f"s_add_u32 m0, s{S_XLB}, s{S_XPREV}" if p == 0 else f"s_add_u32 m0, s{S_XLB2}, s{S_XPREV}",
              f"s_add_u32 s{S_T0}, s{S_XOFF}, {p * 16 * 2048}",
              f"buffer_load_dwordx4 v{V_XE}, {sr(S_SRDX, 4)}, s{S_T0} offen lds"])
    g.append([f"buffer_load_dwordx4 v{V_XO}, {sr(S_SRDX, 4)}, s{S_T0} offen offset:1024 lds"])
    return g


def dma_w(m0expr):
    g = []
    g.append(m0expr + [f"buffer_load_dwordx4 v{V_W0}, {sr(S_SRDW, 4)}, s{S_WOFF} offen lds"])
    g.append([f"s_mov_b64 exec, {sr(S_LO, 2)}",
              f"buffer_load_dwordx4 v{V_W1}, {sr(S_SRDW, 4)}, s{S_WOFF} offen offset:1024 lds",
              f"s_mov_b64 exec, -1",
              f"s_add_u32 s{S_WOFF}, s{S_WOFF}, {32 * 6144}"])
    return g


def interleave(a, ms, rds, extra):
    a("\n".join(rds[0:3]))
    a(ms[0])
    a("\n".join(rds[3:6]))
    a(ms[1])
    a("\n".join(rds[6:8]))
    ex = list(extra)
    for i in range(2, 6):
        a(ms[i])
        if ex:
            a("\n".join(ex.pop(0)))
    for e in ex:
        a("\n".join(e))


def crosshalf(a, op, v, t1, t2):
    a(f"v_mov_b32 v{t1}, v{v}")
    a(f"v_mov_b32 v{t2}, v{v}")
    a("s_nop 1")
    a(f"v_permlane32_swap_b32 v{t1}, v{t2}")
    a("s_nop 1")
    a(f"{op} v{v}, v{t1}, v{t2}")


def feature_map(a, PK, EP, EM, PHP, PHM, T):
    mx, mn, t1, t2, sp, sm_, rp, rm = [T + i for i in range(8)]
    a(f"v_max3_f32 v{mx}, v{PK}, v{PK + 1}, v{PK + 2}")
    a(f"v_min3_f32 v{mn}, v{PK}, v{PK + 1}, v{PK + 2}")
    for i in range(3, 15, 2):
        a(f"v_max3_f32 v{mx}, v{mx}, v{PK + i}, v{PK + i + 1}")
        a(f"v_min3_f32 v{mn}, v{mn}, v{PK + i}, v{PK + i + 1}")
    a(f"v_max_f32 v{mx}, v{mx}, v{PK + 15}")
    a(f"v_min_f32 v{mn}, v{mn}, v{PK + 15}")
    crosshalf(a, "v_max_f32", mx, t1, t2)
    crosshalf(a, "v_min_f32", mn, t1, t2)
    a(f"v_mul_f32 v{mx}, s{S_L2E}, v{mx}")
    a(f"v_mul_f32 v{mn}, s{S_L2E}, v{mn}")
    for i in range(16):
        a(f"v_fma_f32 v{EP + i}, v{PK + i}, s{S_L2E}, -v{mx}")
        a(f"v_fma_f32 v{EM + i}, -v{PK + i}, s{S_L2E}, v{mn}")
    for i in range(16):
        a(f"v_exp_f32 v{EP + i}, v{EP + i}")
        a(f"v_exp_f32 v{EM + i}, v{EM + i}")
    a("s_nop 0")
    a(f"v_add_f32 v{sp}, v{EP}, v{EP + 1}")
    a(f"v_add_f32 v{sm_}, v{EM}, v{EM + 1}")
    for i in range(2, 16):
        a(f"v_add_f32 v{sp}, v{sp}, v{EP + i}")
        a(f"v_add_f32 v{sm_}, v{sm_}, v{EM + i}")
    crosshalf(a, "v_add_f32", sp, t1, t2)
    crosshalf(a, "v_add_f32", sm_, t1, t2)
    a(f"v_rcp_f32 v{rp}, v{sp}")
    a(f"v_rcp_f32 v{rm}, v{sm_}")
    a("s_nop 0")
    for i in range(16):
        a(f"v_mul_f32 v{EP + i}, v{rp}, v{EP + i}")
        a(f"v_mul_f32 v{EM + i}, v{rm}, v{EM + i}")
    for i in range(8):
        a(cvt(PHP + i, EP + 2 * i))
        a(cvt(PHM + i, EM + 2 * i))


def gen():
    a = Asm()
    a.raw(".p2align 8")
    a.raw(f".globl {NAME}")
    a.raw(f".type {NAME},@function")
    a.label(NAME)
    a(f"""
    s_cmp_ge_u32 s2, 256
    s_cbranch_scc1 K1_END
    s_load_dwordx4 s[4:7], s[0:1], 0
    s_load_dwordx4 s[8:11], s[0:1], 24
    s_load_dwordx2 s[12:13], s[0:1], 40
    s_load_dwordx2 s[14:15], s[0:1], 72
    v_and_b32 v{V_LANE}, 63, v0
    v_lshrrev_b32 v{V_T0}, 6, v0
    s_and_b32 s{S_T0}, s2, 7
    v_readfirstlane_b32 s{S_W}, v{V_T0}
    s_lshr_b32 s{S_T1}, s2, 3
    s_lshr_b32 s{S_BR}, s{S_T0}, 2
    s_lshr_b32 s{S_RB}, s{S_T0}, 1
    s_and_b32 s{S_RB}, s{S_RB}, 1
    s_lshl_b32 s{S_RB}, s{S_RB}, 2
    s_and_b32 s{S_T2}, s{S_T1}, 3
    s_add_u32 s{S_RB}, s{S_RB}, s{S_T2}
    s_and_b32 s{S_HP}, s{S_T0}, 1
    s_lshl_b32 s{S_HP}, s{S_HP}, 3
    s_lshr_b32 s{S_T2}, s{S_T1}, 2
    s_add_u32 s{S_HP}, s{S_HP}, s{S_T2}
    s_and_b32 s{S_WM}, s{S_W}, 3
    s_lshr_b32 s{S_WN}, s{S_W}, 2
    s_lshl_b32 s{S_HEAD}, s{S_HP}, 1
    s_add_u32 s{S_HEAD}, s{S_HEAD}, s{S_WN}
    s_mov_b32 s{S_LO}, -1
    s_mov_b32 s{S_LO + 1}, 0
    s_mov_b32 s{S_L2E}, {f32bits(math.log2(math.e))}
    s_mov_b32 s{S_C}, {f32bits(math.log2(math.e) / math.sqrt(32.0))}
    """)
    a(f"""
    v_lshrrev_b32 v{V_T0}, 3, v{V_LANE}
    v_and_b32 v{V_T1}, 7, v{V_LANE}
    v_lshrrev_b32 v{V_T2}, 4, v{V_LANE}
    v_xor_b32 v{V_T1}, v{V_T1}, v{V_T2}
    v_lshlrev_b32 v{V_T1}, 4, v{V_T1}
    v_lshl_add_u32 v{V_XE}, v{V_T0}, 11, v{V_T1}
    v_xor_b32 v{V_XO}, 64, v{V_XE}
    v_add_u32 v{V_XO}, {8 * 2048 - 1024}, v{V_XO}
    """)
    a(f"s_mul_i32 s{S_T0}, s{S_W}, 12")
    a(f"s_mov_b32 s{S_T1}, 6144")
    for which, vdst in ((0, V_W0), (1, V_W1)):
        a(f"""
        v_lshrrev_b32 v{V_T0}, 3, v{V_LANE}
        v_add_u32 v{V_T0}, s{S_T0}, v{V_T0}
        """)
        if which:
            a(f"v_add_u32 v{V_T0}, 8, v{V_T0}")
        a(f"""
        v_lshrrev_b32 v{V_T1}, 5, v{V_T0}
        v_and_b32 v{V_T0}, 31, v{V_T0}
        v_mul_lo_u32 v{V_T2}, v{V_T0}, s{S_T1}
        v_lshl_add_u32 v{V_T2}, v{V_T1}, 11, v{V_T2}
        v_lshlrev_b32 v{V_T0}, 1, v{V_T0}
        v_and_b32 v{V_T0}, 4, v{V_T0}
        v_and_b32 v{V_T1}, 7, v{V_LANE}
        v_xor_b32 v{V_T1}, v{V_T1}, v{V_T0}
        v_lshl_add_u32 v{vdst}, v{V_T1}, 4, v{V_T2}
        """)
        if which:
            a(f"v_subrev_u32 v{vdst}, 1024, v{vdst}")
    a(f"""
    v_and_b32 v{V_T0}, 31, v{V_LANE}
    s_lshl_b32 s{S_T0}, s{S_WM}, 6
    v_add_u32 v{V_T1}, s{S_T0}, v{V_T0}
    v_lshlrev_b32 v{V_T1}, 7, v{V_T1}
    v_lshrrev_b32 v{V_T0}, 1, v{V_T0}
    v_and_b32 v{V_T0}, 7, v{V_T0}
    v_lshrrev_b32 v{V_T2}, 5, v{V_LANE}
    v_xor_b32 v{V_T0}, v{V_T0}, v{V_T2}
    """)
    for kk in range(4):
        a(f"v_xor_b32 v{V_T2}, {2 * kk}, v{V_T0}")
        a(f"v_lshl_add_u32 v{V_XA + kk}, v{V_T2}, 4, v{V_T1}")
    a(f"""
    v_lshrrev_b32 v{V_T0}, 5, v{V_LANE}
    v_lshlrev_b32 v{V_T0}, 3, v{V_T0}
    v_bfe_u32 v{V_T1}, v{V_LANE}, 2, 2
    v_add_u32 v{V_T0}, v{V_T0}, v{V_T1}
    v_lshlrev_b32 v{V_T0}, 7, v{V_T0}
    v_lshrrev_b32 v{V_T1}, 1, v{V_T1}
    v_xor_b32 v{V_T1}, s{S_WN}, v{V_T1}
    v_lshl_add_u32 v{V_T0}, v{V_T1}, 6, v{V_T0}
    v_bfe_u32 v{V_T1}, v{V_LANE}, 4, 1
    v_lshl_add_u32 v{V_T0}, v{V_T1}, 5, v{V_T0}
    v_and_b32 v{V_T1}, 3, v{V_LANE}
    v_lshl_add_u32 v{V_T0}, v{V_T1}, 3, v{V_T0}
    v_add_u32 v{V_WA}, 98304, v{V_T0}
    """)
    a(f"""
    s_lshl_b32 s{S_XOFF}, s{S_RB}, 8
    s_lshl_b32 s{S_T0}, s{S_W}, 5
    s_add_u32 s{S_XOFF}, s{S_XOFF}, s{S_T0}
    s_lshl_b32 s{S_XOFF}, s{S_XOFF}, 11
    s_lshl_b32 s{S_WOFF}, s{S_HP}, 7
    s_lshl_b32 s{S_XLB}, s{S_W}, 12
    s_add_u32 s{S_XLB2}, s{S_XLB}, 2048
    s_mul_i32 s{S_WLB}, s{S_W}, 1536
    s_add_u32 s{S_WLB}, s{S_WLB}, 98304
    s_waitcnt lgkmcnt(0)
    s_cmp_eq_u32 s{S_BR}, 0
    s_cselect_b64 s[4:5], s[4:5], s[8:9]
    s_cselect_b64 s[6:7], s[6:7], s[10:11]
    """)
    srd(a, S_SRDX, 4, 2048 * 1024 * 2)
    srd(a, S_SRDW, 6, 1024 * 3072 * 2)
    srd(a, S_SRDWS, 14, WS_BYTES)
    srd(a, S_SRDPHI, 12, 32 * 32 * 32 * 2)
    a(f"""
    v_lshlrev_b32 v{V_T0}, 4, v{V_LANE}
    s_lshl_b32 s{S_T0}, s{S_W}, 11
    s_add_u32 m0, s{S_T0}, 147456
    s_lshl_b32 s{S_T1}, s{S_HEAD}, 11
    buffer_load_dwordx4 v{V_T0}, {sr(S_SRDPHI, 4)}, s{S_T1} offen lds
    buffer_load_dwordx4 v{V_T0}, {sr(S_SRDPHI, 4)}, s{S_T1} offen offset:1024 lds
    """)
    def pro_x(slot, p):
        a(f"s_mov_b32 s{S_XPREV}, {slot * 32768}")
        for g in dma_x(p):
            a("\n".join(g))

    def pro_w(slot):
        for g in dma_w([f"s_add_u32 m0, s{S_WLB}, {slot * 12288}", "s_nop 0"]):
            a("\n".join(g))

    pro_w(0)
    pro_x(0, 0)
    pro_x(0, 1)
    a(f"s_add_u32 s{S_XOFF}, s{S_XOFF}, 128")
    pro_x(1, 0)
    pro_w(1)
    pro_x(1, 1)
    pro_w(2)
    a(f"s_add_u32 s{S_XOFF}, s{S_XOFF}, 128")
    for i in range(96):
        a(f"v_mov_b32 v{ACC + i}, 0")
    for i in range(20):
        a(f"v_mov_b32 v{F[0] + i}, 0")
    a(f"""
    s_mov_b32 s{S_J}, 0
    s_mov_b32 s{S_XCUR}, 0
    s_mov_b32 s{S_XPREV}, 65536
    s_mov_b32 s{S_WT}, 0
    """)
    a.label("K1_LOOP")
    a(f"""
    s_add_u32 s{S_T3}, s{S_XCUR}, 32768
    s_cmp_eq_u32 s{S_T3}, 98304
    s_cselect_b32 s{S_T3}, 0, s{S_T3}
    s_sub_u32 s{S_XD}, s{S_T3}, s{S_XCUR}
    s_cmp_lt_u32 s{S_J}, 14
    s_cselect_b32 s{S_SRDX + 2}, {2048 * 1024 * 2}, 0
    s_xor_b32 s{S_T1}, s{S_WT}, 24576
    s_add_u32 s{S_T1}, s{S_T1}, 12288
    """)
    a("s_waitcnt vmcnt(8) lgkmcnt(0)")
    a("s_barrier")
    interleave(a, mfmas(F[0]), reads(F[1], 0, 0),
               dma_x(0) + dma_w([f"s_add_u32 m0, s{S_WLB}, s{S_T1}", "s_nop 0"]))
    a(f"v_add_u32 v{V_XA + 0}, s{S_XD}, v{V_XA + 0}")
    a("s_waitcnt lgkmcnt(0)")
    interleave(a, mfmas(F[1]), reads(F[0], 1, 2048), [])
    a(f"v_add_u32 v{V_XA + 1}, s{S_XD}, v{V_XA + 1}")
    a("s_waitcnt vmcnt(8) lgkmcnt(0)")
    a("s_barrier")
    interleave(a, mfmas(F[0]), reads(F[1], 2, 12288),
               dma_x(1) + dma_w([f"s_add_u32 m0, s{S_WLB}, s{S_WT}", "s_nop 0"]))
    a(f"v_add_u32 v{V_XA + 2}, s{S_XD}, v{V_XA + 2}")
    a("s_waitcnt lgkmcnt(0)")
    interleave(a, mfmas(F[1]), reads(F[0], 3, 12288 + 2048), [])
    a(f"""
    v_add_u32 v{V_XA + 3}, s{S_XD}, v{V_XA + 3}
    v_xor_b32 v{V_WA}, 0x6000, v{V_WA}
    s_xor_b32 s{S_WT}, s{S_WT}, 24576
    s_mov_b32 s{S_XPREV}, s{S_XCUR}
    s_mov_b32 s{S_XCUR}, s{S_T3}
    s_add_u32 s{S_XOFF}, s{S_XOFF}, 128
    s_add_u32 s{S_J}, s{S_J}, 1
    s_cmp_lt_u32 s{S_J}, 16
    s_cbranch_scc1 K1_LOOP
    s_waitcnt lgkmcnt(0)
    """)
    for m in mfmas(F[0]):
        a(m)
    a(f"""
    s_lshl_b32 s{S_T0}, s{S_RB}, 3
    s_lshl_b32 s{S_T1}, s{S_WM}, 1
    s_add_u32 s{S_T0}, s{S_T0}, s{S_T1}
    s_lshl_b32 s{S_T1}, s{S_HEAD}, 6
    s_add_u32 s{S_T0}, s{S_T0}, s{S_T1}
    v_lshlrev_b32 v{V_T0}, 4, v{V_LANE}
    s_lshl_b32 s{S_T1}, s{S_T0}, 11
    s_lshl_b32 s{S_T2}, s{S_T0}, 12
    s_add_u32 s{S_T2}, s{S_T2}, {WS_KVA}
    s_cmp_eq_u32 s{S_BR}, 0
    s_cbranch_scc0 K1_EPI_B
    s_add_u32 s{S_T1}, s{S_T1}, {WS_QA}
    s_nop 7
    """)
    T = 160
    for seg in range(3):
        for mt in range(2):
            d = acc(seg, mt)
            t = T + (seg * 2 + mt) * 8
            if seg == 0:
                for i in range(16):
                    a(f"v_mul_f32 v{d + i}, s{S_C}, v{d + i}")
            for i in range(8):
                a(cvt(t + i, d + 2 * i))
            if seg == 0:
                so, base = S_T1, mt * 2048
            else:
                so, base = S_T2, (seg - 1) * 2048
                if mt == 1:
                    so = S_T3
                    if seg == 1:
                        a(f"s_add_u32 s{S_T3}, s{S_T2}, 4096")
            a(f"buffer_store_dwordx4 {vr(t, 4)}, v{V_T0}, {sr(S_SRDWS, 4)}, s{so} offen offset:{base}")
            a(f"buffer_store_dwordx4 {vr(t + 4, 4)}, v{V_T0}, {sr(S_SRDWS, 4)}, s{so} offen offset:{base + 1024}")
    a("s_endpgm")

    a.label("K1_EPI_B")
    a(f"s_add_u32 s{S_T1}, s{S_T1}, {WS_QB}")
    a("s_waitcnt vmcnt(0)")
    a("s_barrier")
    QT = 240
    for mt in range(2):
        d = acc(0, mt)
        t = QT + mt * 8
        for i in range(8):
            a(cvt(t + i, d + 2 * i))
        a(f"buffer_store_dwordx4 {vr(t, 4)}, v{V_T0}, {sr(S_SRDWS, 4)}, s{S_T1} offen offset:{mt * 2048}")
        a(f"buffer_store_dwordx4 {vr(t + 4, 4)}, v{V_T0}, {sr(S_SRDWS, 4)}, s{S_T1} offen offset:{mt * 2048 + 1024}")
    WPH = 16
    ONES = 24
    KF, VF = 28, 36
    PHF = 44
    V_PW, V_PR = 60, 61
    a(f"""
    v_lshrrev_b32 v{V_T1}, 5, v{V_LANE}
    v_lshlrev_b32 v{V_T1}, 2, v{V_T1}
    v_bfe_u32 v{V_T2}, v{V_LANE}, 2, 2
    v_add_u32 v{V_T1}, v{V_T1}, v{V_T2}
    v_lshlrev_b32 v{V_T1}, 6, v{V_T1}
    v_bfe_u32 v{V_T2}, v{V_LANE}, 4, 1
    v_lshl_add_u32 v{V_T1}, v{V_T2}, 5, v{V_T1}
    v_and_b32 v{V_T2}, 3, v{V_LANE}
    v_lshl_add_u32 v{V_T1}, v{V_T2}, 3, v{V_T1}
    s_lshl_b32 s{S_T0}, s{S_W}, 11
    s_add_u32 s{S_T0}, s{S_T0}, 147456
    v_add_u32 v{V_T2}, s{S_T0}, v{V_T1}
    s_lshl_b32 s{S_T0}, s{S_W}, 14
    v_add_u32 v{V_PR}, s{S_T0}, v{V_T1}
    v_and_b32 v{V_T3}, 31, v{V_LANE}
    v_lshlrev_b32 v{V_T3}, 6, v{V_T3}
    v_lshrrev_b32 v{V_T4}, 5, v{V_LANE}
    v_lshl_add_u32 v{V_T3}, v{V_T4}, 3, v{V_T3}
    v_add_u32 v{V_PW}, s{S_T0}, v{V_T3}
    """)
    for u in range(2):
        for j in range(2):
            a(dsrtr(WPH + 4 * u + 2 * j, V_T2, u * 1024 + j * 512))
    for i in range(4):
        a(f"v_mov_b32 v{ONES + i}, 0x3f803f80")
    KVP, KVM, ZP, ZM = 160, 176, 192, 208
    PK = 224
    for mt in range(2):
        k = acc(1, mt)
        v = acc(2, mt)
        for i in range(8):
            a(cvt(KF + i, k + 2 * i))
        for i in range(8):
            a(cvt(VF + i, v + 2 * i))
        a("s_waitcnt lgkmcnt(0)")
        a(m32(PK, WPH, KF, None))
        a(m32(PK, WPH + 4, KF + 4, PK))
        a("s_nop 15")
        EP, EM = k, acc(0, mt)
        PHP, PHM = v, v + 8
        feature_map(a, PK, EP, EM, PHP, PHM, 2)
        for s_, ph in ((0, PHP), (1, PHM)):
            for j in range(4):
                a(f"ds_write_b64 v{V_PW}, {vr(ph + 2 * j, 2)} offset:{s_ * 2048 + 16 * j}")
        a("s_waitcnt lgkmcnt(0)")
        for s_ in range(2):
            for u in range(2):
                for j in range(2):
                    a(dsrtr(PHF + (s_ * 2 + u) * 4 + 2 * j, V_PR, s_ * 2048 + u * 1024 + j * 512))
        a("s_waitcnt lgkmcnt(0)")
        for s_, kv, z in ((0, KVP, ZP), (1, KVM, ZM)):
            for u in range(2):
                first = (mt == 0 and u == 0)
                a(m32(kv, PHF + (s_ * 2 + u) * 4, VF + 4 * u, None if first else kv))
                a(m32(z, PHF + (s_ * 2 + u) * 4, ONES, None if first else z))
    a("s_nop 15")
    a(f"""
    s_lshl_b32 s{S_T0}, s{S_W}, 14
    v_add_u32 v{V_T1}, s{S_T0}, v{V_T0}
    """)
    for c in range(16):
        a(f"ds_write_b128 v{V_T1}, {vr(KVP + 4 * c, 4)} offset:{c * 1024}")
    a("s_waitcnt lgkmcnt(0)")
    a("s_barrier")
    a(f"""
    s_lshl_b32 s{S_T0}, s{S_WN}, 16
    s_lshl_b32 s{S_T1}, s{S_WM}, 12
    s_add_u32 s{S_T0}, s{S_T0}, s{S_T1}
    v_add_u32 v{V_T1}, s{S_T0}, v{V_T0}
    """)
    R = 64
    for src in range(4):
        for c in range(4):
            a(dsr128(R + (src * 4 + c) * 4, V_T1, src * 16384 + c * 1024))
    a(f"""
    s_lshl_b32 s{S_T0}, s{S_HEAD}, 3
    s_add_u32 s{S_T0}, s{S_T0}, s{S_RB}
    s_lshl_b32 s{S_T0}, s{S_T0}, 14
    s_add_u32 s{S_T0}, s{S_T0}, s{S_T1}
    s_add_u32 s{S_T0}, s{S_T0}, {WS_KVP}
    s_waitcnt lgkmcnt(0)
    """)
    for i in range(16):
        a(f"v_add_f32 v{R + i}, v{R + i}, v{R + 16 + i}")
        a(f"v_add_f32 v{R + 32 + i}, v{R + 32 + i}, v{R + 48 + i}")
    for i in range(16):
        a(f"v_add_f32 v{R + i}, v{R + i}, v{R + 32 + i}")
    for c in range(4):
        a(f"buffer_store_dwordx4 {vr(R + 4 * c, 4)}, v{V_T0}, {sr(S_SRDWS, 4)}, s{S_T0} offen offset:{c * 1024}")
    a.label("K1_END")
    a("s_endpgm")
    return a.text(), kdesc(NAME, 256), f"; @launch kernel={NAME} grid=(256,1,1) block=(512,1,1) lds={LDS_BYTES}"
```

```python
from asmlib import *
from common import *
from k1 import feature_map, crosshalf
import math

NAME = "attn_kernel"
LDS_FRAG = 65536
LDS_PHI = 65536 + 8192
LDS_BYTES = LDS_PHI + 2048

S_SRDWS, S_SRDPHI, S_SRDKV = 16, 20, 24
S_HEAD, S_QB, S_W = 32, 33, 34
S_KVOFF, S_LB, S_SLOT, S_J = 35, 36, 37, 38
S_T0, S_T1, S_T2, S_T3 = 40, 41, 42, 43
S_TILE = 44
S_KVB = 45
V_LANE, V_L16, V_DMA, V_CUR, V_PREV = 1, 2, 3, 4, 5
V_T0, V_T1, V_T2, V_T3 = 6, 7, 8, 9
Q = 16
CN = 32
S = [48, 64]
P = [80, 88]
O = 96
L = 112
SEL = 116
IDX = 120
K = [124, 132]
V = [140, 148]


def exp(r):
    return f"v_exp_f32 v{r}, v{r}"


def iteration(a, par, kread, vread, do_qk=True, do_exp=True, do_pv=True, extra=None):
    X = S[1 - par]
    Y = S[par]
    Kn = K[1 - par]
    Pa = P[par]
    Pb = P[1 - par]
    Vp = V[1 - par]
    if kread:
        a(dsr128(K[par], kread[0], kread[1]))
        a(dsr128(K[par] + 4, kread[0], kread[1] + 1024))
    if vread:
        a(dsr128(V[par], vread[0], vread[1] + 2048))
        a(dsr128(V[par] + 4, vread[0], vread[1] + 3072))
    E = (lambda lo, hi: [a(exp(Y + i)) for i in range(lo, hi)]) if do_exp else (lambda lo, hi: None)
    C = (lambda i: a(cvt(Pa + i, Y + 2 * i))) if do_exp else (lambda i: None)
    if do_qk:
        a(m32(X, Kn, Q, CN))
    E(0, 3)
    if do_pv:
        a(m32(O, Vp, Pb, O))
    if extra:
        a("\n".join(extra))
    E(3, 6)
    C(0), C(1)
    if do_qk:
        a(m32(X, Kn + 4, Q + 4, X))
    E(6, 9)
    C(2), C(3)
    if do_pv:
        a(m32(O, Vp + 4, Pb + 4, O))
    E(9, 13)
    C(4), C(5)
    if do_pv:
        a(sm16(L, SEL, Pb, IDX))
    E(13, 16)
    C(6)
    a("s_waitcnt lgkmcnt(0)")
    C(7)


def dma_stage():
    return [f"s_add_u32 m0, s{S_LB}, s{S_SLOT}",
            f"s_add_u32 s{S_SLOT}, s{S_SLOT}, 16384",
            f"buffer_load_dwordx4 v{V_DMA}, {sr(S_SRDKV, 4)}, s{S_KVOFF} offen lds",
            f"buffer_load_dwordx4 v{V_DMA}, {sr(S_SRDKV, 4)}, s{S_KVOFF} offen offset:1024 lds",
            f"s_and_b32 s{S_SLOT}, s{S_SLOT}, 0xffff",
            f"s_add_u32 s{S_KVOFF}, s{S_KVOFF}, 16384"]


def gen():
    a = Asm()
    a.raw(".p2align 8")
    a.raw(f".globl {NAME}")
    a.raw(f".type {NAME},@function")
    a.label(NAME)
    a(f"""
    s_cmp_ge_u32 s2, 256
    s_cbranch_scc1 K2_END
    s_load_dwordx2 s[4:5], s[0:1], 72
    s_load_dwordx2 s[6:7], s[0:1], 40
    v_and_b32 v{V_LANE}, 63, v0
    v_lshrrev_b32 v{V_T0}, 6, v0
    s_and_b32 s{S_T0}, s2, 7
    v_readfirstlane_b32 s{S_W}, v{V_T0}
    s_lshr_b32 s{S_T1}, s2, 3
    s_lshl_b32 s{S_HEAD}, s{S_T0}, 2
    s_lshr_b32 s{S_T2}, s{S_T1}, 3
    s_add_u32 s{S_HEAD}, s{S_HEAD}, s{S_T2}
    s_and_b32 s{S_QB}, s{S_T1}, 7
    s_mov_b32 s{S_L2E}, {f32bits(math.log2(math.e))}
    v_lshlrev_b32 v{V_L16}, 4, v{V_LANE}
    s_lshl_b32 s{S_LB}, s{S_W}, 11
    v_add_u32 v{V_DMA}, s{S_LB}, v{V_L16}
    s_lshl_b32 s{S_TILE}, s{S_QB}, 3
    s_add_u32 s{S_TILE}, s{S_TILE}, s{S_W}
    s_lshl_b32 s{S_KVB}, s{S_HEAD}, 18
    s_add_u32 s{S_KVB}, s{S_KVB}, {WS_KVA}
    s_mov_b32 s{S_KVOFF}, s{S_KVB}
    s_mov_b32 s{S_SLOT}, 0
    s_waitcnt lgkmcnt(0)
    """)
    srd(a, S_SRDWS, 4, WS_BYTES)
    srd(a, S_SRDPHI, 6, 32 * 32 * 32 * 2)
    srd(a, S_SRDKV, 4, 0)
    a(f"s_add_u32 s{S_SRDKV + 2}, s{S_KVB}, {1 << 18}")
    PART = 160
    QBF = 224
    a(f"""
    s_lshl_b32 s{S_T0}, s{S_HEAD}, 17
    s_add_u32 s{S_T0}, s{S_T0}, {WS_KVP}
    """)
    for p in range(8):
        a(f"buffer_load_dwordx4 {vr(PART + p * 8, 4)}, v{V_DMA}, {sr(S_SRDWS, 4)}, s{S_T0} offen")
        a(f"buffer_load_dwordx4 {vr(PART + p * 8 + 4, 4)}, v{V_DMA}, {sr(S_SRDWS, 4)}, s{S_T0} offen offset:1024")
        if p < 7:
            a(f"s_add_u32 s{S_T0}, s{S_T0}, 16384")
    a(f"""
    s_lshl_b32 s{S_T0}, s{S_HEAD}, 6
    s_add_u32 s{S_T0}, s{S_T0}, s{S_TILE}
    s_lshl_b32 s{S_T0}, s{S_T0}, 11
    s_add_u32 s{S_T1}, s{S_T0}, {WS_QB}
    buffer_load_dwordx4 {vr(QBF, 4)}, v{V_L16}, {sr(S_SRDWS, 4)}, s{S_T1} offen
    buffer_load_dwordx4 {vr(QBF + 4, 4)}, v{V_L16}, {sr(S_SRDWS, 4)}, s{S_T1} offen offset:1024
    s_lshl_b32 s{S_T2}, s{S_W}, 8
    s_add_u32 m0, s{S_T2}, {LDS_PHI}
    s_lshl_b32 s{S_T3}, s{S_HEAD}, 11
    s_add_u32 s{S_T3}, s{S_T3}, s{S_T2}
    v_lshlrev_b32 v{V_T0}, 2, v{V_LANE}
    buffer_load_dword v{V_T0}, {sr(S_SRDPHI, 4)}, s{S_T3} offen lds
    """)
    a("\n".join(dma_stage()))
    a("\n".join(dma_stage()))
    a(f"""
    s_add_u32 s{S_T1}, s{S_T0}, {WS_QA}
    buffer_load_dwordx4 {vr(Q, 4)}, v{V_L16}, {sr(S_SRDWS, 4)}, s{S_T1} offen
    buffer_load_dwordx4 {vr(Q + 4, 4)}, v{V_L16}, {sr(S_SRDWS, 4)}, s{S_T1} offen offset:1024
    """)
    a(f"""
    v_and_b32 v{V_T0}, 3, v{V_LANE}
    v_bfe_u32 v{V_T1}, v{V_LANE}, 2, 1
    v_mov_b32 v{V_T2}, 0x3f803f80
    v_cmp_gt_u32 vcc, 2, v{V_T0}
    v_mov_b32 v{IDX}, 0x44444444
    v_mov_b32 v{V_T3}, 0xeeeeeeee
    v_cndmask_b32 v{V_T2}, 0, v{V_T2}, vcc
    v_cmp_eq_u32 vcc, 1, v{V_T0}
    s_nop 1
    v_cndmask_b32 v{IDX}, v{IDX}, v{V_T3}, vcc
    v_cmp_eq_u32 vcc, 0, v{V_T1}
    s_nop 1
    v_cndmask_b32 v{SEL}, 0, v{V_T2}, vcc
    v_cndmask_b32 v{SEL + 1}, 0, v{V_T2}, vcc
    v_cndmask_b32 v{SEL + 2}, v{V_T2}, 0, vcc
    v_cndmask_b32 v{SEL + 3}, v{V_T2}, 0, vcc
    """)
    for i in range(16):
        a(f"v_mov_b32 v{O + i}, 0")
    for i in range(4):
        a(f"v_mov_b32 v{L + i}, 0")
    a(f"v_mov_b32 v{V_CUR}, v{V_L16}")
    a(f"v_mov_b32 v{V_PREV}, v{V_L16}")
    a(f"""
    v_lshrrev_b32 v{V_T1}, 5, v{V_LANE}
    v_lshlrev_b32 v{V_T1}, 2, v{V_T1}
    v_bfe_u32 v{V_T2}, v{V_LANE}, 2, 2
    v_add_u32 v{V_T1}, v{V_T1}, v{V_T2}
    v_lshlrev_b32 v{V_T1}, 6, v{V_T1}
    v_bfe_u32 v{V_T2}, v{V_LANE}, 4, 1
    v_lshl_add_u32 v{V_T1}, v{V_T2}, 5, v{V_T1}
    v_and_b32 v{V_T2}, 3, v{V_LANE}
    v_lshl_add_u32 v{V_T1}, v{V_T2}, 3, v{V_T1}
    v_add_u32 v{V_T1}, {LDS_PHI}, v{V_T1}
    s_lshl_b32 s{S_T0}, s{S_W}, 10
    s_add_u32 s{S_T0}, s{S_T0}, {LDS_FRAG}
    v_add_u32 v{V_T2}, s{S_T0}, v{V_L16}
    v_add_u32 v{V_T3}, {LDS_FRAG}, v{V_L16}
    """)
    a("s_waitcnt vmcnt(6)")
    for p in range(1, 8):
        for i in range(8):
            a(f"v_add_f32 v{PART + i}, v{PART + i}, v{PART + p * 8 + i}")
    for i in range(4):
        a(cvt(PART + 8 + i, PART + 2 * i))
    a(f"ds_write_b128 v{V_T2}, {vr(PART + 8, 4)}")
    a("s_waitcnt lgkmcnt(0)")
    a("s_barrier")
    WPH = 232
    FR = 160
    for u in range(2):
        for j in range(2):
            a(dsrtr(WPH + 4 * u + 2 * j, V_T1, u * 1024 + j * 512))
    a("s_waitcnt lgkmcnt(0)")
    for f in range(8):
        a(dsr128(FR + 4 * f, V_T3, f * 1024))
    PQ, EP, EM, PHP, PHM = 48, 64, 192, 80, 88
    a(m32(PQ, WPH, QBF, None))
    a(m32(PQ, WPH + 4, QBF + 4, PQ))
    a("s_nop 15")
    feature_map(a, PQ, EP, EM, PHP, PHM, 240)
    NUM, DEN = 208, 124
    a("s_waitcnt lgkmcnt(0)")
    for s_, ph in ((0, PHP), (1, PHM)):
        for u in range(2):
            first = (s_ == 0 and u == 0)
            a(m32(NUM, FR + (s_ * 2 + u) * 4, ph + 4 * u, None if first else NUM))
            a(m32(DEN, FR + (4 + s_ * 2 + u) * 4, ph + 4 * u, None if first else DEN))
    a(f"""
    s_lshl_b32 s{S_T0}, s{S_TILE}, 5
    s_add_u32 s{S_T0}, s{S_T0}, s{S_HEAD}
    s_lshl_b32 s{S_T0}, s{S_T0}, 11
    s_add_u32 s{S_T0}, s{S_T0}, {WS_O}
    s_add_u32 s{S_T1}, s{S_T0}, {4 * MB}
    s_nop 10
    v_add_f32 v{V_T0}, {f32bits(1e-6)}, v{DEN}
    v_rcp_f32 v{V_T0}, v{V_T0}
    s_nop 0
    """)
    for i in range(16):
        a(f"v_mul_f32 v{NUM + i}, v{V_T0}, v{NUM + i}")
    for i in range(8):
        a(cvt(240 + i, NUM + 2 * i))
    a(f"buffer_store_dwordx4 {vr(240, 4)}, v{V_L16}, {sr(S_SRDWS, 4)}, s{S_T1} offen")
    a(f"buffer_store_dwordx4 {vr(244, 4)}, v{V_L16}, {sr(S_SRDWS, 4)}, s{S_T1} offen offset:1024")
    a(f"s_mov_b32 s{S_TILE}, s{S_T0}")

    a("s_waitcnt vmcnt(2)")
    a("s_barrier")
    a("\n".join(dma_stage()))
    a(dsr128(K[0], V_CUR, 0))
    a(dsr128(K[0] + 4, V_CUR, 1024))
    a(dsr128(K[1], V_CUR, 4096))
    a(dsr128(K[1] + 4, V_CUR, 4096 + 1024))
    a("s_waitcnt lgkmcnt(0)")
    a(m32(S[0], K[0], Q, None))
    a(m32(S[0], K[0] + 4, Q + 4, S[0]))
    a("s_nop 15")
    mx, t1, t2 = V_T0, V_T1, V_T2
    Y = S[0]
    a(f"v_max3_f32 v{mx}, v{Y}, v{Y + 1}, v{Y + 2}")
    for i in range(3, 15, 2):
        a(f"v_max3_f32 v{mx}, v{mx}, v{Y + i}, v{Y + i + 1}")
    a(f"v_max_f32 v{mx}, v{mx}, v{Y + 15}")
    crosshalf(a, "v_max_f32", mx, t1, t2)
    for i in range(16):
        a(f"v_sub_f32 v{CN + i}, 0, v{mx}")
    for i in range(16):
        a(f"v_sub_f32 v{Y + i}, v{Y + i}, v{mx}")
    iteration(a, 0, (V_CUR, 2 * 4096), (V_CUR, 0), do_pv=False)
    iteration(a, 1, (V_CUR, 3 * 4096), (V_CUR, 4096))
    a(f"s_mov_b32 s{S_J}, 1")
    a.label("K2_LOOP")
    a(f"""
    v_mov_b32 v{V_PREV}, v{V_CUR}
    v_add_u32 v{V_CUR}, 16384, v{V_CUR}
    v_and_b32 v{V_CUR}, 0xffff, v{V_CUR}
    s_waitcnt vmcnt(2)
    s_barrier
    """)
    iteration(a, 0, (V_CUR, 0), (V_PREV, 2 * 4096), extra=dma_stage())
    iteration(a, 1, (V_CUR, 4096), (V_PREV, 3 * 4096))
    iteration(a, 0, (V_CUR, 2 * 4096), (V_CUR, 0))
    iteration(a, 1, (V_CUR, 3 * 4096), (V_CUR, 4096))
    a(f"""
    s_add_u32 s{S_J}, s{S_J}, 1
    s_cmp_lt_u32 s{S_J}, 16
    s_cbranch_scc1 K2_LOOP
    """)
    iteration(a, 0, None, (V_CUR, 2 * 4096))
    iteration(a, 1, None, (V_CUR, 3 * 4096), do_qk=False)
    a("s_nop 1")
    iteration(a, 0, None, None, do_qk=False, do_exp=False)
    a("s_nop 15")
    LS = V_T0
    a(f"v_add_f32 v{LS}, v{L}, v{L + 1}")
    a(f"v_mul_f32 v{V_T1}, 0, v{O}")
    for i in range(1, 16):
        a(f"v_fma_f32 v{V_T1}, v{O + i}, 0, v{V_T1}")
    a(f"""
    v_add_f32 v{V_T1}, v{V_T1}, v{LS}
    s_mov_b32 s{S_T0}, {f32bits(2.0 ** 100)}
    v_cmp_ngt_f32 vcc, s{S_T0}, v{V_T1}
    s_cbranch_vccnz K2_SLOW
    """)
    a.label("K2_FIN")
    a(f"v_rcp_f32 v{V_T1}, v{LS}")
    a("s_nop 0")
    for i in range(16):
        a(f"v_mul_f32 v{O + i}, v{V_T1}, v{O + i}")
    for i in range(8):
        a(cvt(P[0] + i, O + 2 * i))
    a(f"buffer_store_dwordx4 {vr(P[0], 4)}, v{V_L16}, {sr(S_SRDWS, 4)}, s{S_TILE} offen")
    a(f"buffer_store_dwordx4 {vr(P[0] + 4, 4)}, v{V_L16}, {sr(S_SRDWS, 4)}, s{S_TILE} offen offset:1024")
    a.label("K2_END")
    a("s_endpgm")

    a.label("K2_SLOW")
    M, AL, MT = 10, 11, 12
    for i in range(16):
        a(f"v_mov_b32 v{O + i}, 0")
    a(f"v_mov_b32 v{LS}, 0")
    a(f"v_mov_b32 v{M}, 0xff800000")
    a(f"s_mov_b32 s{S_KVOFF}, s{S_KVB}")
    a(f"s_mov_b32 s{S_J}, 0")
    a.label("K2_SLOOP")
    for i in range(2):
        a(f"buffer_load_dwordx4 {vr(K[0] + 4 * i, 4)}, v{V_L16}, {sr(S_SRDKV, 4)}, s{S_KVOFF} offen offset:{i * 1024}")
    for i in range(2):
        a(f"buffer_load_dwordx4 {vr(V[0] + 4 * i, 4)}, v{V_L16}, {sr(S_SRDKV, 4)}, s{S_KVOFF} offen offset:{2048 + i * 1024}")
    a("s_waitcnt vmcnt(0)")
    a(m32(Y, K[0], Q, None))
    a(m32(Y, K[0] + 4, Q + 4, Y))
    a("s_nop 15")
    a(f"v_max3_f32 v{MT}, v{Y}, v{Y + 1}, v{Y + 2}")
    for i in range(3, 15, 2):
        a(f"v_max3_f32 v{MT}, v{MT}, v{Y + i}, v{Y + i + 1}")
    a(f"v_max3_f32 v{MT}, v{MT}, v{Y + 15}, v{M}")
    crosshalf(a, "v_max_f32", MT, V_T1, V_T2)
    a(f"v_sub_f32 v{AL}, v{M}, v{MT}")
    a(f"v_exp_f32 v{AL}, v{AL}")
    a(f"v_mov_b32 v{M}, v{MT}")
    for i in range(16):
        a(f"v_sub_f32 v{Y + i}, v{Y + i}, v{MT}")
    for i in range(16):
        a(exp(Y + i))
    a(f"v_mul_f32 v{LS}, v{AL}, v{LS}")
    for i in range(16):
        a(f"v_mul_f32 v{O + i}, v{AL}, v{O + i}")
    for i in range(16):
        a(f"v_add_f32 v{LS}, v{LS}, v{Y + i}")
    for i in range(8):
        a(cvt(P[0] + i, Y + 2 * i))
    a("s_nop 1")
    a(m32(O, V[0], P[0], O))
    a(m32(O, V[0] + 4, P[0] + 4, O))
    a(f"""
    s_add_u32 s{S_KVOFF}, s{S_KVOFF}, 4096
    s_add_u32 s{S_J}, s{S_J}, 1
    s_cmp_lt_u32 s{S_J}, 64
    s_cbranch_scc1 K2_SLOOP
    s_nop 15
    """)
    crosshalf(a, "v_add_f32", LS, V_T1, V_T2)
    a("s_branch K2_FIN")
    return a.text(), kdesc(NAME, 256), f"; @launch kernel={NAME} grid=(256,1,1) block=(512,1,1) lds={LDS_BYTES}"
```

```python
from asmlib import *
from common import *

NAME = "oproj_kernel"
LDS_BYTES = 131072

S_SRDO, S_SRDW, S_SRDOUT = 16, 20, 24
S_BR, S_TM, S_TN, S_W, S_WM, S_WN, S_KS = 32, 33, 34, 35, 36, 37, 38
S_OOFF, S_WOFF, S_LB, S_LB2, S_J = 39, 40, 41, 42, 43
S_T0, S_T1, S_T2, S_T3 = 44, 45, 46, 47
V_LANE, V_L16, V_W0, V_W1, V_OA, V_WA0, V_WA1 = 1, 2, 3, 4, 5, 6, 7
V_T0, V_T1, V_T2, V_T3 = 8, 9, 10, 11
F = [16, 32]
ACC = 64


def acc(cgi, mt):
    return ACC + (cgi * 2 + mt) * 16


def reads(fs, slot, u):
    r = []
    ob = slot * 16384 + u * 1024
    wb = slot * 16384 + u * 4096
    r.append(dsr128(fs + 0, V_OA, ob))
    r.append(dsrtr(fs + 8, V_WA0, wb))
    r.append(dsrtr(fs + 10, V_WA0, wb + 2048))
    r.append(dsr128(fs + 4, V_OA, ob + 4096))
    r.append(dsrtr(fs + 12, V_WA1, wb))
    r.append(dsrtr(fs + 14, V_WA1, wb + 2048))
    return r


def mfmas(fs):
    r = []
    for cgi in range(2):
        for mt in range(2):
            d = acc(cgi, mt)
            r.append(m32(d, fs + 8 + 4 * cgi, fs + 4 * mt, d))
    return r


def dma(slot):
    g = []
    g.append([f"s_add_u32 m0, s{S_LB}, {slot * 16384}",
              "s_nop 0",
              f"buffer_load_dwordx4 v{V_L16}, {sr(S_SRDO, 4)}, s{S_OOFF} offen lds"])
    g.append([f"buffer_load_dwordx4 v{V_L16}, {sr(S_SRDO, 4)}, s{S_OOFF} offen offset:1024 lds",
              f"s_add_u32 m0, s{S_LB2}, {slot * 16384}",
              f"s_add_u32 s{S_OOFF}, s{S_OOFF}, 4096"])
    g.append([f"buffer_load_dwordx4 v{V_W0}, {sr(S_SRDW, 4)}, s{S_WOFF} offen lds"])
    g.append([f"buffer_load_dwordx4 v{V_W1}, {sr(S_SRDW, 4)}, s{S_WOFF} offen offset:1024 lds",
              f"s_add_u32 s{S_WOFF}, s{S_WOFF}, {64 * 2048}"])
    return g


def interleave(a, ms, rds, extra):
    ex = list(extra)
    a("\n".join(rds[0:3]))
    a(ms[0])
    a("\n".join(rds[3:6]))
    for i in range(1, 4):
        a(ms[i])
        if ex:
            a("\n".join(ex.pop(0)))
    for e in ex:
        a("\n".join(e))


def gen():
    a = Asm()
    a.raw(".p2align 8")
    a.raw(f".globl {NAME}")
    a.raw(f".type {NAME},@function")
    a.label(NAME)
    a(f"""
    s_cmp_ge_u32 s2, 256
    s_cbranch_scc1 K3_END
    s_load_dwordx2 s[4:5], s[0:1], 72
    s_load_dwordx2 s[6:7], s[0:1], 16
    s_load_dwordx2 s[8:9], s[0:1], 48
    s_load_dwordx2 s[10:11], s[0:1], 56
    v_and_b32 v{V_LANE}, 63, v0
    v_lshrrev_b32 v{V_T0}, 6, v0
    s_and_b32 s{S_T0}, s2, 7
    v_readfirstlane_b32 s{S_W}, v{V_T0}
    s_lshr_b32 s{S_T1}, s2, 3
    s_lshr_b32 s{S_BR}, s{S_T0}, 2
    s_lshr_b32 s{S_TM}, s{S_T0}, 1
    s_and_b32 s{S_TM}, s{S_TM}, 1
    s_lshl_b32 s{S_TM}, s{S_TM}, 3
    s_and_b32 s{S_T2}, s{S_T1}, 7
    s_add_u32 s{S_TM}, s{S_TM}, s{S_T2}
    s_and_b32 s{S_TN}, s{S_T0}, 1
    s_lshl_b32 s{S_TN}, s{S_TN}, 2
    s_lshr_b32 s{S_T2}, s{S_T1}, 3
    s_add_u32 s{S_TN}, s{S_TN}, s{S_T2}
    s_and_b32 s{S_WM}, s{S_W}, 1
    s_lshr_b32 s{S_WN}, s{S_W}, 1
    s_and_b32 s{S_WN}, s{S_WN}, 1
    s_lshr_b32 s{S_KS}, s{S_W}, 2
    v_lshlrev_b32 v{V_L16}, 4, v{V_LANE}
    """)
    a(f"""
    s_lshl_b32 s{S_OOFF}, s{S_TM}, 2
    s_lshr_b32 s{S_T0}, s{S_W}, 1
    s_add_u32 s{S_OOFF}, s{S_OOFF}, s{S_T0}
    s_lshl_b32 s{S_OOFF}, s{S_OOFF}, 5
    s_and_b32 s{S_T0}, s{S_W}, 1
    s_add_u32 s{S_OOFF}, s{S_OOFF}, s{S_T0}
    s_lshl_b32 s{S_OOFF}, s{S_OOFF}, 11
    s_lshl_b32 s{S_T0}, s{S_BR}, 22
    s_add_u32 s{S_OOFF}, s{S_OOFF}, s{S_T0}
    s_add_u32 s{S_OOFF}, s{S_OOFF}, {WS_O}
    s_lshl_b32 s{S_LB}, s{S_W}, 11
    s_add_u32 s{S_LB2}, s{S_LB}, 65536
    s_lshl_b32 s{S_WOFF}, s{S_W}, 14
    s_lshl_b32 s{S_T0}, s{S_TN}, 8
    s_add_u32 s{S_WOFF}, s{S_WOFF}, s{S_T0}
    """)
    a(f"""
    v_lshrrev_b32 v{V_T0}, 4, v{V_LANE}
    v_lshlrev_b32 v{V_T1}, 2, v{V_T0}
    v_and_b32 v{V_T2}, 15, v{V_LANE}
    v_xor_b32 v{V_T1}, v{V_T1}, v{V_T2}
    v_lshlrev_b32 v{V_T1}, 4, v{V_T1}
    v_lshl_add_u32 v{V_W0}, v{V_T0}, 11, v{V_T1}
    v_add_u32 v{V_W1}, {8192 - 1024}, v{V_W0}
    """)
    a(f"""
    s_lshl_b32 s{S_T0}, s{S_WM}, 13
    s_lshl_b32 s{S_T1}, s{S_KS}, 11
    s_add_u32 s{S_T0}, s{S_T0}, s{S_T1}
    v_add_u32 v{V_OA}, s{S_T0}, v{V_L16}
    """)
    a(f"""
    v_lshrrev_b32 v{V_T0}, 5, v{V_LANE}
    v_lshlrev_b32 v{V_T0}, 2, v{V_T0}
    v_bfe_u32 v{V_T1}, v{V_LANE}, 2, 2
    v_add_u32 v{V_T0}, v{V_T0}, v{V_T1}
    v_lshlrev_b32 v{V_T0}, 8, v{V_T0}
    v_bfe_u32 v{V_T2}, v{V_LANE}, 4, 1
    v_lshl_add_u32 v{V_T0}, v{V_T2}, 5, v{V_T0}
    v_and_b32 v{V_T2}, 3, v{V_LANE}
    v_lshl_add_u32 v{V_T0}, v{V_T2}, 3, v{V_T0}
    s_lshl_b32 s{S_T0}, s{S_KS}, 13
    s_add_u32 s{S_T0}, s{S_T0}, 65536
    v_add_u32 v{V_T0}, s{S_T0}, v{V_T0}
    s_lshl_b32 s{S_T1}, s{S_WN}, 1
    v_xor_b32 v{V_T1}, s{S_T1}, v{V_T1}
    v_lshl_add_u32 v{V_WA0}, v{V_T1}, 6, v{V_T0}
    v_xor_b32 v{V_T1}, 1, v{V_T1}
    v_lshl_add_u32 v{V_WA1}, v{V_T1}, 6, v{V_T0}
    s_waitcnt lgkmcnt(0)
    s_cmp_eq_u32 s{S_BR}, 0
    s_cselect_b64 s[6:7], s[6:7], s[8:9]
    """)
    srd(a, S_SRDO, 4, WS_BYTES)
    srd(a, S_SRDW, 6, 1024 * 1024 * 2)
    srd(a, S_SRDOUT, 10, 2048 * 2048 * 2)
    for st in range(3):
        for g in dma(st):
            a("\n".join(g))
    for i in range(64):
        a(f"v_mov_b32 v{ACC + i}, 0")
    for i in range(16):
        a(f"v_mov_b32 v{F[0] + i}, 0")
    a(f"s_mov_b32 s{S_J}, 0")
    a.label("K3_LOOP")
    for st in range(4):
        a(f"""
        s_cmp_lt_u32 s{S_J}, 13
        s_cselect_b32 s{S_SRDO + 2}, {WS_BYTES}, 0
        s_add_u32 s{S_J}, s{S_J}, 1
        s_waitcnt vmcnt(8) lgkmcnt(0)
        s_barrier
        """)
        interleave(a, mfmas(F[0]), reads(F[1], st, 0), dma((st + 3) % 4))
        a("s_waitcnt lgkmcnt(0)")
        interleave(a, mfmas(F[1]), reads(F[0], st, 1), [])
    a(f"""
    s_cmp_lt_u32 s{S_J}, 16
    s_cbranch_scc1 K3_LOOP
    s_waitcnt lgkmcnt(0)
    """)
    for m in mfmas(F[0]):
        a(m)
    a("s_waitcnt vmcnt(0)")
    a("s_barrier")
    a(f"""
    s_lshl_b32 s{S_T0}, s{S_W}, 13
    v_add_u32 v{V_T0}, s{S_T0}, v{V_L16}
    s_xor_b32 s{S_T0}, s{S_T0}, {4 << 13}
    v_add_u32 v{V_T1}, s{S_T0}, v{V_L16}
    s_cmp_eq_u32 s{S_KS}, 0
    s_cbranch_scc1 K3_KS0
    s_nop 7
    """)
    R = 128
    for half, (give, keep, lab) in enumerate(((0, 1, None), (1, 0, "K3_KS0"))):
        if lab:
            a.label(lab)
            a("s_nop 7")
        for cgi in range(2):
            for c in range(4):
                a(f"ds_write_b128 v{V_T0}, {vr(acc(cgi, give) + 4 * c, 4)} offset:{(cgi * 4 + c) * 1024}")
        for cgi in range(2):
            for i in range(16):
                a(f"v_mov_b32 v{R + 32 + cgi * 16 + i}, v{acc(cgi, keep) + i}")
        if half == 0:
            a("s_branch K3_JOIN")
    a.label("K3_JOIN")
    a("s_waitcnt lgkmcnt(0)")
    a("s_barrier")
    for c in range(8):
        a(dsr128(R + 4 * c, V_T1, c * 1024))
    a(f"""
    s_lshl_b32 s{S_T0}, s{S_TM}, 7
    s_lshl_b32 s{S_T1}, s{S_WM}, 6
    s_add_u32 s{S_T0}, s{S_T0}, s{S_T1}
    s_lshl_b32 s{S_T1}, s{S_KS}, 5
    s_add_u32 s{S_T0}, s{S_T0}, s{S_T1}
    s_lshl_b32 s{S_T0}, s{S_T0}, 12
    s_lshl_b32 s{S_T1}, s{S_BR}, 11
    s_add_u32 s{S_T0}, s{S_T0}, s{S_T1}
    s_lshl_b32 s{S_T1}, s{S_TN}, 8
    s_add_u32 s{S_T0}, s{S_T0}, s{S_T1}
    s_lshl_b32 s{S_T1}, s{S_WN}, 7
    s_add_u32 s{S_T0}, s{S_T0}, s{S_T1}
    v_and_b32 v{V_T2}, 31, v{V_LANE}
    v_lshlrev_b32 v{V_T2}, 12, v{V_T2}
    v_lshrrev_b32 v{V_T3}, 5, v{V_LANE}
    v_lshl_add_u32 v{V_T2}, v{V_T3}, 4, v{V_T2}
    s_waitcnt lgkmcnt(0)
    """)
    for i in range(32):
        a(f"v_add_f32 v{R + i}, v{R + i}, v{R + 32 + i}")
    T = 64
    for cgi in range(2):
        for i in range(8):
            a(cvt(T + cgi * 8 + i, R + cgi * 16 + 2 * i))
    a("s_nop 1")
    for cgi in range(2):
        for jp in range(2):
            b = T + cgi * 8 + jp * 4
            a(f"v_permlane32_swap_b32 v{b}, v{b + 2}")
            a(f"v_permlane32_swap_b32 v{b + 1}, v{b + 3}")
    a("s_nop 1")
    for cgi in range(2):
        for jp in range(2):
            b = T + cgi * 8 + jp * 4
            a(f"buffer_store_dwordx4 {vr(b, 4)}, v{V_T2}, {sr(S_SRDOUT, 4)}, s{S_T0} offen offset:{cgi * 64 + jp * 32}")
    a.label("K3_END")
    a("s_endpgm")
    return a.text(), kdesc(NAME, 192), f"; @launch kernel={NAME} grid=(256,1,1) block=(512,1,1) lds={LDS_BYTES}"
```

```python
import sys, importlib
sys.path.insert(0, "gen")
import k1, k2, k3
OUT = sys.argv[1] if len(sys.argv) > 1 else "concat_heads__softmax_full_mha__linear_kernel_hedgehog__prompt.s"
ref = open("concat_heads__softmax_full_mha__linear_kernel_hedgehog__prompt.s.ref").read().split("\n")
hdr = [l for l in ref if l.startswith(";") and "@launch" not in l and "Override" not in l and "grid=ceil" not in l]
parts = [m.gen() for m in (k1, k2, k3)]
s = "\n".join(hdr) + "\n"
s += "\n".join(p[2] for p in parts) + "\n"
s += '.amdgcn_target "amdgcn-amd-amdhsa--gfx950"\n.text\n'
s += "".join(p[0] for p in parts)
s += '.section .rodata,"a"\n'
s += "".join(p[1] for p in parts)
open(OUT, "w").write(s)
print("wrote", OUT, len(s), "bytes")
```
